```python
import torch

def _softmax(x, axis=-1):
    return torch.softmax(x, dim=axis)
def _gelu(x):
    return torch.nn.functional.gelu(x, approximate="tanh")
def _silu(x):
    return torch.nn.functional.silu(x)
def _sigmoid(x):
    return torch.sigmoid(x)
def _layernorm(x, axis=-1, eps=1e-5):
    m = x.mean(dim=axis, keepdim=True)
    v = x.var(dim=axis, keepdim=True, unbiased=False)
    return (x - m) / torch.sqrt(v + eps)
def _scatter_add(tgt, idx, src, axis=0):
    return tgt.clone().index_add_(axis, idx, src)
def _segment_sum(src, seg, n):
    out = torch.zeros((n,) + src.shape[1:], dtype=src.dtype)
    return out.index_add_(0, seg, src)
def _pad(x, pw):
    flat = tuple(v for pair in reversed(pw) for v in pair)
    return torch.nn.functional.pad(x, flat)

kernel_name = 'interleave_layers__linear_kernel_hedgehog__mixer_channel_mlp__prompt'

def setup_inputs():

    _w = (lambda a: (lambda t: t.to(torch.bfloat16) if t.is_floating_point() else t)(torch.as_tensor(a)))
    def _A_setup():
        B, S, D, H = 1, 2048, 512, 32
        Dh = D // H
        return {
            "x": _w((lambda *s: torch.randn(*s, dtype=torch.bfloat16) * 0.05)(B, S, D)),
            "wqkv": _w((lambda *s: torch.randn(*s, dtype=torch.bfloat16) * 0.4)(D, 3 * D)),
            "w_phi": _w((lambda *s: torch.randn(*s, dtype=torch.bfloat16) * 0.4)(H, Dh, Dh) * (Dh ** -0.5)),
            "wo": _w((lambda *s: torch.randn(*s, dtype=torch.bfloat16) * 0.05)(D, D)),
        }
    _A_in = _A_setup()

    def _B_setup():
        B, S, D, F = 1, 2048, 512, 1376
        return {
            "x": _w((lambda *s: torch.randn(*s, dtype=torch.bfloat16) * 0.05)(B, S, D)),
            "w1": _w((lambda *s: torch.randn(*s, dtype=torch.bfloat16) * 3.2)(D, F) * (D ** -0.5)),
            "b1": _w((lambda *s: torch.randn(*s, dtype=torch.bfloat16) * 0.8)(F)),
            "w2": _w((lambda *s: torch.randn(*s, dtype=torch.bfloat16) * 0.8)(F, D) * (F ** -0.5)),
            "b2": _w((lambda *s: torch.randn(*s, dtype=torch.bfloat16) * 0.8)(D)),
        }
    _B_in = _B_setup()

    return {
        "A_x": _A_in["x"],
        "A_wqkv": _A_in["wqkv"],
        "A_w_phi": _A_in["w_phi"],
        "A_wo": _A_in["wo"],
        "B_x": _B_in["x"],
        "B_w1": _B_in["w1"],
        "B_b1": _B_in["b1"],
        "B_w2": _B_in["w2"],
        "B_b2": _B_in["b2"],
    }

def reference(A_x, A_wqkv, A_w_phi, A_wo, B_x, B_w1, B_b1, B_w2, B_b2):
    def _A_ref(x, wqkv, w_phi, wo):
        B, S, D = x.shape
        H = 32; Dh = D // H
        qkv = (lambda x, *d: x.permute(*d))((x @ wqkv).reshape(B, S, 3, H, Dh), 2, 0, 3, 1, 4)
        q, k, v = qkv[0], qkv[1], qkv[2]
        pq = torch.einsum("bhsd,hdf->bhsf", q, w_phi)
        pk = torch.einsum("bhsd,hdf->bhsf", k, w_phi)
        phi_q = torch.concatenate([_softmax(pq, axis=-1), _softmax(-pq, axis=-1)], axis=-1)
        phi_k = torch.concatenate([_softmax(pk, axis=-1), _softmax(-pk, axis=-1)], axis=-1)
        kv = torch.einsum("bhsf,bhsd->bhfd", phi_k, v)
        z  = torch.einsum("bhsf->bhf", phi_k)
        num = torch.einsum("bhqf,bhfd->bhqd", phi_q, kv)
        den = torch.einsum("bhqf,bhf->bhq", phi_q, z)[..., None] + 1e-6
        o = num / den
        return (lambda x, *d: x.permute(*d))(o, 0, 2, 1, 3).reshape(B, S, D) @ wo

    def _B_ref(x, w1, b1, w2, b2):
        y = _layernorm(x, axis=-1)
        h = _gelu(torch.einsum("bsd,df->bsf", y, w1) + b1)
        return torch.einsum("bsf,fd->bsd", h, w2) + b2

    x = A_x
    x = x + _A_ref(_layernorm(x, axis=-1), A_wqkv, A_w_phi, A_wo)
    x = x + _B_ref(_layernorm(x, axis=-1), B_w1, B_b1, B_w2, B_b2)
    x = x + _A_ref(_layernorm(x, axis=-1), A_wqkv, A_w_phi, A_wo)
    x = x + _B_ref(_layernorm(x, axis=-1), B_w1, B_b1, B_w2, B_b2)
    return x
```

```python
class A:
    def __init__(self):
        self.L = []
        self.uid = 0
    def __call__(self, s=""):
        for line in s.split("\n"):
            self.L.append(line)
    def lab(self, base="L"):
        self.uid += 1
        return f"{base}_{self.uid}"
    def text(self):
        return "\n".join(self.L) + "\n"

KNAME = "interleave_layers__linear_kernel_hedgehog__mixer_channel_mlp__prompt_kernel"

def header(a, launches_comment):
    a(launches_comment)
    a('.amdgcn_target "amdgcn-amd-amdhsa--gfx950"')
    a(".text")

def kernel_begin(a, name):
    a(f".globl {name}\n.p2align 8\n.type {name},@function\n{name}:")

def descriptor(a, name, vgpr=256, sgpr=102, accum=256):
    a(f""".p2align 6
.amdhsa_kernel {name}
  .amdhsa_next_free_vgpr {vgpr}
  .amdhsa_next_free_sgpr {sgpr}
  .amdhsa_accum_offset {accum}
  .amdhsa_group_segment_fixed_size 0
  .amdhsa_kernarg_size 96
  .amdhsa_user_sgpr_count 2
  .amdhsa_user_sgpr_kernarg_segment_ptr 1
  .amdhsa_system_sgpr_workgroup_id_x 1
.end_amdhsa_kernel""")
```

```python
from asmlib import *
from layout import *

PREP = "prep_kernel"
PREP_GRID = 304
PREP_LDS = 16384 + 1024


def gen_prep(a):
    kernel_begin(a, PREP)
    a(f"""
    s_cmp_ge_u32 s2, {PREP_GRID}
    s_cbranch_scc1 Lp_end
    s_load_dwordx8 s[16:23], s[0:1], 0
    s_load_dwordx2 s[24:25], s[0:1], 40     ; w1
    s_load_dwordx2 s[26:27], s[0:1], 56     ; w2
    s_load_dwordx2 s[28:29], s[0:1], 88     ; ws
    v_lshrrev_b32 v1, 6, v0
    v_and_b32 v0, 63, v0                    ; lane
    v_readfirstlane_b32 s3, v1              ; wave
    s_mov_b32 s7, 0x20000
    s_mov_b32 s10, {WS_BYTES}
    s_mov_b32 s11, 0x20000
    s_mov_b32 s15, 0x20000
    s_waitcnt lgkmcnt(0)
    s_mov_b32 s8, s28
    s_mov_b32 s9, s29
    s_mov_b32 s36, 0
    s_mov_b32 s38, 0
    s_mov_b32 s37, 0
    s_mov_b32 s40, 1
    s_and_b32 s39, s2, 3
    s_lshl_b32 s32, s39, 2
    s_add_u32 s32, s32, s3
    s_cmp_ge_u32 s2, 96
    s_cbranch_scc1 Lp_not_qkv
    s_mov_b32 s4, s18
    s_mov_b32 s5, s19
    s_mov_b32 s6, {512*1536*2}
    s_mov_b32 s30, 3072
    s_lshr_b32 s31, s2, 2                   ; colpair 0..23
    s_lshr_b32 s41, s31, 3                  ; section q,k,v
    s_and_b32 s42, s31, 7
    s_add_u32 s43, s41, 2
    s_cmp_ge_u32 s43, 3
    s_cselect_b32 s44, 3, 0
    s_sub_u32 s43, s43, s44                 ; slot: q->2 k->0 v->1
    s_mul_i32 s33, s42, {2*96*KB}
    s_lshl_b32 s44, s43, 15
    s_add_u32 s33, s33, s44
    s_add_u32 s33, s33, {WQKV}
    s_mov_b32 s34, {96*KB}
    s_mov_b32 s35, 1024
    s_cmp_lt_u32 s41, 2
    s_cselect_b32 s36, 1, 0
    s_mov_b32 s38, 1
    s_lshl_b32 s37, s31, 1
    s_branch Lp_dec_done
Lp_not_qkv:
    s_cmp_ge_u32 s2, 184
    s_cbranch_scc1 Lp_not_w1
    s_mov_b32 s4, s24
    s_mov_b32 s5, s25
    s_mov_b32 s6, {512*1376*2}
    s_mov_b32 s30, 2752
    s_sub_u32 s31, s2, 96
    s_lshr_b32 s31, s31, 2                  ; colpair 0..21
    s_lshl_b32 s33, s31, 16
    s_add_u32 s33, s33, {W1}
    s_mov_b32 s34, {32*KB}
    s_mov_b32 s35, 1024
    s_mov_b32 s38, 1
    s_lshl_b32 s37, s31, 1
    s_add_u32 s37, s37, 48
    s_cmp_lt_u32 s31, 21
    s_cselect_b32 s40, 1, 0
    s_branch Lp_dec_done
Lp_not_w1:
    s_mov_b32 s30, 1024
    s_mov_b32 s34, 1024
    s_mov_b32 s35, 2048
    s_cmp_ge_u32 s2, 216
    s_cbranch_scc1 Lp_w2
    s_mov_b32 s4, s22
    s_mov_b32 s5, s23
    s_mov_b32 s6, {512*512*2}
    s_sub_u32 s31, s2, 184
    s_lshr_b32 s31, s31, 2                  ; j8
    s_lshl_b32 s33, s31, 16
    s_add_u32 s33, s33, {WO}
    s_branch Lp_dec_done
Lp_w2:
    s_mov_b32 s4, s26
    s_mov_b32 s5, s27
    s_mov_b32 s6, {1376*512*2}
    s_sub_u32 s41, s2, 216                  ; 0..87
    s_and_b32 s31, s41, 7                   ; j8
    s_lshr_b32 s41, s41, 3                  ; 0..10
    s_lshl_b32 s32, s41, 2
    s_add_u32 s32, s32, s3                  ; kblock 0..43
    s_mul_i32 s33, s31, {172*KB}
    s_add_u32 s33, s33, {W2}
    s_cmp_ge_u32 s32, 43
    s_cselect_b32 s33, {OOB}, s33
Lp_dec_done:
    s_mul_i32 s41, s32, s35
    s_lshl_b32 s41, s41, 1
    s_add_u32 s33, s33, s41
    s_mul_i32 s41, s32, s30
    s_lshl_b32 s41, s41, 5
    s_lshl_b32 s42, s31, 7
    s_add_u32 s41, s41, s42
    s_lshl_b32 s42, s30, 3                  ; 8 rows
    v_lshrrev_b32 v2, 3, v0
    v_mul_lo_u32 v2, v2, s30
    v_and_b32 v3, 7, v0
    v_lshl_add_u32 v2, v3, 4, v2            ; (l>>3)*ld + (l&7)*16
    s_lshl_b32 s43, s3, 12
    """)
    for n in range(4):
        a(f"""
    s_mov_b32 m0, s43
    s_add_u32 s43, s43, 1024
    buffer_load_dwordx4 v2, s[4:7], s41 offen lds
    s_add_u32 s41, s41, s42""")
    a(f"""
    v_lshlrev_b32 v4, 4, v0                 ; lane*16
    s_cmp_ge_u32 s2, 256
    s_cbranch_scc1 Lp_phi
    s_mov_b32 s12, s16
    s_mov_b32 s13, s17
    s_mov_b32 s14, {2048*512*2}
    v_lshrrev_b32 v5, 3, v0                 ; c
    v_and_b32 v6, 1, v5                     ; h
    v_bfe_u32 v7, v5, 1, 1                  ; i
    v_lshrrev_b32 v8, 2, v5                 ; ft
    v_lshlrev_b32 v9, 10, v3                ; t'*1024
    v_lshl_add_u32 v9, v8, 6, v9
    v_lshl_add_u32 v9, v6, 5, v9
    v_lshl_add_u32 v9, v7, 4, v9
    s_lshl_b32 s44, s2, 13                  ; 8 tokens * 1024
    s_lshl_b32 s45, s3, 8                   ; j8 = 2w -> 256 bytes
    s_add_u32 s44, s44, s45
    buffer_load_dwordx4 v[16:19], v9, s[12:15], s44 offen
    buffer_load_dwordx4 v[20:23], v9, s[12:15], s44 offen offset:128
    ; clears
    v_mov_b32 v24, -1
    v_mov_b32 v25, -1
    v_mov_b32 v26, -1
    v_mov_b32 v27, -1
    s_lshl_b32 s44, s2, 13
    s_lshl_b32 s45, s3, 11
    s_add_u32 s44, s44, s45
    s_add_u32 s44, s44, {KVP}
    buffer_store_dwordx4 v[24:27], v4, s[8:11], s44 offen
    buffer_store_dwordx4 v[24:27], v4, s[8:11], s44 offen offset:1024
    s_cmp_ge_u32 s3, 2
    s_cbranch_scc1 Lp_noclr
    s_lshl_b32 s44, s2, 9
    s_mul_i32 s45, s3, {KVZ}
    s_add_u32 s44, s44, s45
    s_sub_u32 s45, 0, s3
    v_mov_b32 v28, s45
    v_mov_b32 v29, s45
    v_mov_b32 v30, s45
    v_mov_b32 v31, s45
    s_mov_b32 exec_hi, 0
    buffer_store_dwordx4 v[28:31], v4, s[8:11], s44 offen
    s_mov_b64 exec, -1
Lp_noclr:
    v_lshrrev_b32 v10, 1, v5
    v_lshlrev_b32 v10, 10, v10
    v_lshl_add_u32 v10, v6, 9, v10
    v_lshl_add_u32 v10, v3, 4, v10
    s_lshr_b32 s44, s2, 2
    s_lshl_b32 s46, s44, 15                 ; T*32KB
    s_and_b32 s45, s2, 3
    s_lshl_b32 s47, s45, 7                  ; wq*8*16
    s_add_u32 s46, s46, s47
    s_lshl_b32 s47, s3, 13                  ; j8=2w -> 8KB
    s_add_u32 s46, s46, s47
    s_add_u32 s46, s46, {XF}
    s_add_u32 s47, s46, 4096
    s_lshl_b32 s48, s44, 11
    s_lshl_b32 s49, s45, 6
    s_add_u32 s48, s48, s49
    s_lshl_b32 s49, s3, 9
    s_add_u32 s48, s48, s49
    s_add_u32 s48, s48, {XS}
    v_lshlrev_b32 v11, 3, v3
    v_bfe_u32 v12, v0, 4, 1
    v_lshl_add_u32 v11, v12, 2, v11
    v_mov_b32 v13, 0x3f803f80
    s_waitcnt vmcnt(2)
    buffer_store_dwordx4 v[16:19], v10, s[8:11], s46 offen
    buffer_store_dwordx4 v[20:23], v10, s[8:11], s47 offen
    """)
    for i2 in range(2):
        r = 16 + 4 * i2
        A_, B_ = 32 + 4 * i2, 33 + 4 * i2
        a(f"""
    v_dot2_f32_bf16 v{A_}, v{r}, v13, 0
    v_dot2_f32_bf16 v{B_}, v{r}, v{r}, 0
    v_dot2_f32_bf16 v{A_}, v{r+1}, v13, v{A_}
    v_dot2_f32_bf16 v{B_}, v{r+1}, v{r+1}, v{B_}
    v_dot2_f32_bf16 v{A_}, v{r+2}, v13, v{A_}
    v_dot2_f32_bf16 v{B_}, v{r+2}, v{r+2}, v{B_}
    v_dot2_f32_bf16 v{A_}, v{r+3}, v13, v{A_}
    v_dot2_f32_bf16 v{B_}, v{r+3}, v{r+3}, v{B_}
    s_nop 3
    v_permlane16_swap_b32 v{A_}, v{B_}
    s_nop 1
    v_add_f32 v{A_}, v{A_}, v{B_}
    s_nop 1
    v_add_f32_dpp v{A_}, v{A_}, v{A_} row_ror:8 row_mask:0xf bank_mask:0xf
    v_mov_b32 v{B_}, v{A_}
    s_nop 1
    v_permlane32_swap_b32 v{A_}, v{B_}
    s_nop 1
    v_add_f32 v{A_}, v{A_}, v{B_}
    """)
    a(f"""
    s_mov_b64 exec, 0x00ff00ff
    buffer_store_dword v32, v11, s[8:11], s48 offen
    buffer_store_dword v36, v11, s[8:11], s48 offen offset:256
    s_mov_b64 exec, -1
    s_branch Lp_tr
Lp_phi:
    s_cmp_ge_u32 s2, 272
    s_cbranch_scc1 Lp_tr
    s_cmp_ge_u32 s3, 2
    s_cbranch_scc1 Lp_tr
    s_mov_b32 s12, s20
    s_mov_b32 s13, s21
    s_mov_b32 s14, {32*16*16*2}
    s_sub_u32 s44, s2, 256
    s_lshl_b32 s44, s44, 1
    s_add_u32 s44, s44, s3                  ; head
    s_lshl_b32 s45, s44, 9
    v_lshrrev_b32 v5, 5, v0                 ; h
    v_bfe_u32 v6, v0, 3, 2                  ; g
    v_and_b32 v7, 3, v0
    v_lshl_add_u32 v6, v6, 2, v7            ; f
    v_lshlrev_b32 v6, 1, v6
    v_lshl_add_u32 v6, v5, 8, v6            ; 8h rows * 32B
    """)
    for jj in range(8):
        a(f"    buffer_load_ushort v{16+jj}, v6, s[12:15], s45 offen offset:{jj*32}")
    a(f"""
    v_bfe_u32 v7, v0, 2, 1
    v_cmp_eq_u32 vcc, s3, v7
    s_lshl_b32 s45, s44, 10
    s_add_u32 s45, s45, {PHI}
    s_waitcnt vmcnt(0)
    """)
    for q in range(4):
        a(f"    v_lshl_or_b32 v{24+q}, v{17+2*q}, 16, v{16+2*q}")
    for q in range(4):
        a(f"    v_cndmask_b32 v{24+q}, 0, v{24+q}, vcc")
    a(f"""
    buffer_store_dwordx4 v[24:27], v4, s[8:11], s45 offen
Lp_tr:
    v_lshrrev_b32 v5, 5, v0                 ; h
    v_bfe_u32 v6, v0, 4, 1                  ; G
    v_bfe_u32 v7, v0, 2, 2                  ; r
    v_and_b32 v8, 1, v0                     ; cc&1
    v_bfe_u32 v9, v0, 1, 1                  ; cc>>1
    v_lshl_add_u32 v7, v5, 4, v7            ; 16h + r
    v_lshlrev_b32 v7, 7, v7
    v_lshl_add_u32 v7, v9, 3, v7
    s_cmp_eq_u32 s36, 1
    s_cselect_b32 s44, 5, 4
    s_cselect_b32 s45, 4, 5
    v_lshlrev_b32 v6, s44, v6
    v_lshlrev_b32 v8, s45, v8
    v_add3_u32 v7, v7, v6, v8
    s_lshl_b32 s43, s3, 12
    v_add_u32 v7, s43, v7
    v_mov_b32 v60, 0x3f803f80
    v_mov_b32 v61, 0x3f803f80
    v_mov_b32 v62, 0x3f803f80
    v_mov_b32 v63, 0x3f803f80
    s_waitcnt vmcnt(0)
    """)
    for ct in range(2):
        for i in range(2):
            r = 40 + (ct * 2 + i) * 4
            for n in range(2):
                a(f"    ds_read_b64_tr_b16 v[{r+2*n}:{r+2*n+1}], v7 offset:{(8*i+4*n)*128 + ct*64}")
    a(f"""
    s_add_u32 s44, s33, s35
    s_add_u32 s45, s33, s34
    s_cmp_eq_u32 s40, 1
    s_cselect_b32 s45, s45, {OOB}
    s_add_u32 s46, s45, s35
    s_waitcnt lgkmcnt(0)
    buffer_store_dwordx4 v[40:43], v4, s[8:11], s33 offen
    buffer_store_dwordx4 v[44:47], v4, s[8:11], s44 offen
    buffer_store_dwordx4 v[48:51], v4, s[8:11], s45 offen
    buffer_store_dwordx4 v[52:55], v4, s[8:11], s46 offen
    s_cmp_eq_u32 s38, 0
    s_cbranch_scc1 Lp_end
    v_mfma_f32_32x32x16_bf16 v[64:79], v[60:63], v[40:43], 0
    v_mfma_f32_32x32x16_bf16 v[80:95], v[60:63], v[48:51], 0
    v_mfma_f32_32x32x16_bf16 v[64:79], v[60:63], v[44:47], v[64:79]
    v_mfma_f32_32x32x16_bf16 v[80:95], v[60:63], v[52:55], v[80:95]
    v_cmp_gt_u32 vcc, 32, v0
    v_lshlrev_b32 v5, 2, v0
    s_lshl_b32 s43, s3, 8
    s_add_u32 s43, s43, 16384
    v_add_u32 v6, s43, v5
    s_nop 15
    v_cndmask_b32 v64, v80, v64, vcc
    ds_write_b32 v6, v64
    s_waitcnt lgkmcnt(0)
    s_barrier
    s_cmp_lg_u32 s3, 0
    s_cbranch_scc1 Lp_end
    ds_read_b32 v64, v5 offset:16384
    ds_read_b32 v65, v5 offset:{16384+256}
    ds_read_b32 v66, v5 offset:{16384+512}
    ds_read_b32 v67, v5 offset:{16384+768}
    s_lshl_b32 s43, s37, 9
    s_lshl_b32 s44, s39, 2
    s_add_u32 s43, s43, s44
    s_add_u32 s43, s43, {CSP}
    s_waitcnt lgkmcnt(0)
    v_add_f32 v64, v64, v65
    v_add_f32 v66, v66, v67
    v_add_f32 v64, v64, v66
    buffer_store_dword v64, v4, s[8:11], s43 offen
Lp_end:
    s_endpgm
""")


if __name__ == "__main__":
    a = A()
    header(a, f"; @launch kernel={PREP} grid=({PREP_GRID},1,1) block=(256,1,1) lds={PREP_LDS}")
    gen_prep(a)
    a('.section .rodata,"a"')
    descriptor(a, PREP, vgpr=96, sgpr=64, accum=96)
    print(a.text())
```

```python
KB = 1024
MB = 1024 * 1024

FX = 0x0000
FO = 0x6000
FH = 0xA000
FXCC = 0x10000
FLAG_END = 0x20000

KVZ = 0x20000
KVP = 0x100000
CSP = 0x40000
PHI = 0x50000
XS = 0x60000
STAMP = 0xE0000

WQKV = 0x300000
W1 = 0x480000
WO = 0x600000
W2 = 0x680000
XF = 0x800000
OF = 0x1000000
HF = 0x1400000
HF_STRIDE = 0x600000
WS_BYTES = 0x10000000
OOB = 0x10000000

SENTINEL = 0xFFFFFFFF
```

```python
import sys, math, struct
from asmlib import *
from layout import *
from gen_prep import gen_prep, PREP, PREP_GRID, PREP_LDS

MAIN = "main_kernel"
SCR = 98304
CONST = 131072
B1C = CONST + 768
KVA = CONST + 1280
ZERO = KVA + 2560
ZB = ZERO + 64
MAIN_LDS = 136 * 1024
TROW = 224

vLane, vL16, vL16b, vF4, vF2, vStat, vConst, vTWp, vTWv, vTRa, vTRb = range(0, 11)
vKVw, vKVr, vZld, vRedW, vRedR, vFin, vFinS, vOut, vZero = range(11, 20)
PHIF = 20
B2P = 28
PHQ = 32
TMP = 48
vM, vR = 62, 63
ACC = 64
ACT = 128
RES = 240

sW, sC, sJ, sJ8, sT, sTA, sMode, sPass = range(16, 24)
sXin, sXSin, sFXin, sKVP, sKVZ, sOFst, sFOst, sOFld, sFOld = range(24, 33)
sXst, sXSst, sFXst, sHFst, sHFst2, sFHst, sHFld, sFHld, sWQ, sW1, sW1c = range(33, 44)
sA, sB, sCc, sD, sE = 44, 45, 46, 47, 48
sTO = 50
sK1, sK2, sK3 = 52, 53, 54
SRD = "s[4:7]"


def f2u(x):
    return struct.unpack("<I", struct.pack("<f", x))[0]


LOG2E = 1.4426950408889634
GA = -2.0 * LOG2E * math.sqrt(2.0 / math.pi)
GB = GA * 0.044715


class G:
    def __init__(self, stamps=False):
        self.a = A()
        self.stamps = stamps
        self.nst = 0

    def __call__(self, s):
        for l in s.split("\n"):
            l = l.strip()
            if not l:
                continue
            self.a(l if l.endswith(":") else "    " + l)

    def stamp(self, name):
        if not self.stamps:
            return
        n = self.nst
        self.nst += 1
        assert n < 16
        self.names.append(name)
        l = self.a.lab("Lst")
        self(f"""
        s_waitcnt lgkmcnt(0)
        s_memtime s[56:57]
        s_waitcnt lgkmcnt(0)
        s_mov_b32 s{80+n}, s56
        s_cmp_eq_u32 s{sPass}, 0
        s_cselect_b32 s{64+n}, s56, s{64+n}
        """)

    names = []

    def poll(self, voff, soff, mask, val=1):
        l = self.a.lab("Lpoll")
        self(f"""
        {"s_mov_b32 exec_hi, 0" if mask == "0xffffffff" else "s_mov_b64 exec, " + mask}
        s_mov_b32 s{sTO}, 0
        {l}:
        buffer_load_dword v{TMP}, v{voff}, {SRD}, s{soff} offen sc1
        s_add_u32 s{sTO}, s{sTO}, 1
        s_cmp_gt_u32 s{sTO}, 0x40000
        s_cbranch_scc1 Labort
        s_waitcnt vmcnt(0)
        v_cmp_ne_u32 vcc, {val}, v{TMP}
        s_cbranch_vccnz {l}
        s_mov_b64 exec, -1
        """)

    def dual(self, fn):
        l1, l2 = self.a.lab("Lslow"), self.a.lab("Ldone")
        self(f"s_cmp_eq_u32 s{sMode}, 0\ns_cbranch_scc1 {l1}")
        fn("")
        self(f"s_branch {l2}\n{l1}:")
        fn(" sc1")
        self(f"{l2}:")

    def flag(self, soff, offs=(0,)):
        self(f"v_mov_b32 v{TMP}, 1\ns_mov_b64 exec, 1")
        self.dual(lambda f: [self(f"buffer_store_dword v{TMP}, v{vZero}, {SRD}, s{soff} offen offset:{o}{f}") for o in offs])
        self("s_mov_b64 exec, -1")

    def dma_slot(self, sbase, slot, src_off):
        for n in range(2):
            self(f"""
            s_lshl_b32 s{sA}, s{sW}, 12
            s_add_u32 s{sA}, s{sA}, {slot*32768 + n*16384}
            s_mov_b32 m0, s{sA}
            s_add_u32 s{sB}, s{sbase}, {src_off + n*16384}
            """)
            for q in range(4):
                self(f"buffer_load_dwordx4 v{vL16}, {SRD}, s{sB} offen offset:{q*1024} lds")

    def pass0(self, fn):
        l = self.a.lab("Lp0")
        self(f"s_cmp_lg_u32 s{sPass}, 0\ns_cbranch_scc1 {l}")
        fn()
        self(f"{l}:")

    def agpr_loads(self, sbase, first, count, areg0, oob_from=None):
        for idx in range(first, first + count):
            if idx % 4 == 0:
                self(f"s_add_u32 s{sA}, s{sbase}, {idx*1024}")
                if oob_from is not None and idx >= oob_from:
                    self(f"s_cmp_eq_u32 s{sW}, 3\ns_cselect_b32 s{sA}, {OOB}, s{sA}")
            r = areg0 + idx * 4
            self(f"buffer_load_dwordx4 a[{r}:{r+3}], v{vL16}, {SRD}, s{sA} offen offset:{(idx%4)*1024}")

    def stats(self, st, double_ln):
        t = st
        self(f"""
        v_pk_add_f32 v[{t}:{t+1}], v[{t}:{t+1}], v[{t+2}:{t+3}]
        v_pk_add_f32 v[{t+4}:{t+5}], v[{t+4}:{t+5}], v[{t+6}:{t+7}]
        v_pk_add_f32 v[{t}:{t+1}], v[{t}:{t+1}], v[{t+4}:{t+5}]
        s_nop 1
        v_permlane32_swap_b32 v{t}, v{t+1}
        s_nop 1
        v_add_f32 v{t}, v{t}, v{t+1}
        v_mov_b32 v{t+1}, v{t}
        s_nop 1
        v_permlane32_swap_b32 v{t}, v{t+1}
        s_nop 1
        v_mul_f32 v{vM}, {f2u(1/512)}, v{t}
        v_mul_f32 v{t+1}, {f2u(1/512)}, v{t+1}
        v_fma_f32 v{t+1}, -v{vM}, v{vM}, v{t+1}
        v_max_f32 v{t+1}, 0, v{t+1}
        v_add_f32 v{t+2}, {f2u(1e-5)}, v{t+1}
        v_rsq_f32 v{vR}, v{t+2}
        """)
        if double_ln:
            self(f"""
            s_nop 0
            v_mul_f32 v{t+2}, v{vR}, v{vR}
            v_mul_f32 v{t+2}, v{t+2}, v{t+1}
            v_add_f32 v{t+2}, {f2u(1e-5)}, v{t+2}
            v_rsq_f32 v{t+2}, v{t+2}
            s_nop 0
            v_mul_f32 v{vR}, v{vR}, v{t+2}
            """)
        else:
            self("s_nop 0")

    def tgemm(self, slots, accs, wbufs, load=None, pre=9, after_loads=None):
        nt = len(slots)
        NB = len(wbufs)
        seq = [(k, t) for k in range(32) for t in range(nt)]

        def rd(n):
            k, t = seq[n]
            s = slots[t]
            base, off = (vL16b, k * 1024) if s == 2 else (vL16, s * 32768 + k * 1024)
            r = wbufs[n % NB]
            self(f"ds_read_b128 v[{r}:{r+3}], v{base} offset:{off}")

        issued = [0]

        def ld():
            k = issued[0]
            if k < 32:
                if k % 4 == 0:
                    self(f"s_add_u32 s{sA}, s{load[0]}, {k*1024}")
                self(f"buffer_load_dwordx4 v[{ACT+4*k}:{ACT+4*k+3}], v{vL16}, {SRD}, s{sA} offen offset:{(k%4)*1024} sc1")
            elif k < 36:
                n = k - 32
                self(f"buffer_load_dwordx2 v[{TMP+2*n}:{TMP+2*n+1}], v{vStat}, {SRD}, s{load[1]} offen offset:{n*256} sc1")
            else:
                return
            issued[0] += 1

        if load:
            for _ in range(pre):
                ld()
            if after_loads:
                after_loads(pre)
        for n in range(NB):
            rd(n)
        for n, (k, t) in enumerate(seq):
            left = min(NB - 1, len(seq) - 1 - n)
            if load and t == 0:
                self(f"s_waitcnt vmcnt({issued[0]-1-k}) lgkmcnt({left})")
            else:
                self(f"s_waitcnt lgkmcnt({left})")
            r = wbufs[n % NB]
            c = "0" if k == 0 else f"v[{accs[t]}:{accs[t]+15}]"
            self(f"v_mfma_f32_32x32x16_bf16 v[{accs[t]}:{accs[t]+15}], v[{r}:{r+3}], v[{ACT+4*k}:{ACT+4*k+3}], {c}")
            if n + NB < len(seq):
                rd(n + NB)
            if load and t == nt - 1:
                ld()
        if load:
            assert issued[0] == 36

    def cs_read(self, dst, tile, base=CONST):
        for q in range(4):
            self(f"ds_read_b128 v[{dst+4*q}:{dst+4*q+3}], v{vConst} offset:{base-CONST+tile*128+q*16}")

    def center(self, acc, cs):
        self(f"v_sub_f32 v{TMP+8}, 0, v{vM}\nv_sub_f32 v{TMP+9}, 0, v{vM}")
        for q in range(8):
            self(f"v_pk_fma_f32 v[{acc+2*q}:{acc+2*q+1}], v[{cs+2*q}:{cs+2*q+1}], v[{TMP+8}:{TMP+9}], v[{acc+2*q}:{acc+2*q+1}]")

    def pack(self, dst, src, n):
        for q in range(n):
            self(f"v_cvt_pk_bf16_f32 v{dst+q}, v{src+2*q}, v{src+2*q+1}")

    def phi_mfma(self, D, kb):
        self(f"""
        s_nop 1
        v_mfma_f32_32x32x16_bf16 v[{D}:{D+15}], v[{PHIF}:{PHIF+3}], v[{kb}:{kb+3}], 0
        v_mfma_f32_32x32x16_bf16 v[{D}:{D+15}], v[{PHIF+4}:{PHIF+7}], v[{kb+4}:{kb+7}], v[{D}:{D+15}]
        """)

    def softmax2(self, P, E, out):
        t = TMP
        mx, mn, c, c2 = t, t + 2, t + 4, t + 6
        self(f"v_max3_f32 v{mx}, v{P}, v{P+1}, v{P+2}\nv_min3_f32 v{mn}, v{P}, v{P+1}, v{P+2}")
        for q in range(3, 15, 2):
            self(f"v_max3_f32 v{mx}, v{mx}, v{P+q}, v{P+q+1}\nv_min3_f32 v{mn}, v{mn}, v{P+q}, v{P+q+1}")
        self(f"""
        v_max_f32 v{mx}, v{mx}, v{P+15}
        v_min_f32 v{mn}, v{mn}, v{P+15}
        v_mul_f32 v{c}, {f2u(LOG2E)}, v{vR}
        v_mul_f32 v{c2}, {f2u(-LOG2E)}, v{vR}
        v_mul_f32 v{mx}, v{mx}, v{c2}
        v_mul_f32 v{mn}, v{mn}, v{c}
        v_mov_b32 v{c+1}, v{c}
        v_mov_b32 v{c2+1}, v{c2}
        v_mov_b32 v{mx+1}, v{mx}
        v_mov_b32 v{mn+1}, v{mn}
        """)
        for q in range(8):
            self(f"v_pk_fma_f32 v[{E+2*q}:{E+2*q+1}], v[{P+2*q}:{P+2*q+1}], v[{c}:{c+1}], v[{mx}:{mx+1}]")
        for q in range(8):
            self(f"v_pk_fma_f32 v[{P+2*q}:{P+2*q+1}], v[{P+2*q}:{P+2*q+1}], v[{c2}:{c2+1}], v[{mn}:{mn+1}]")
        for q in range(16):
            self(f"v_exp_f32 v{E+q}, v{E+q}")
        for q in range(16):
            self(f"v_exp_f32 v{P+q}, v{P+q}")
        s1, s2 = mx, mn
        self(f"v_pk_add_f32 v[{s1}:{s1+1}], v[{E}:{E+1}], v[{E+2}:{E+3}]\nv_pk_add_f32 v[{s2}:{s2+1}], v[{P}:{P+1}], v[{P+2}:{P+3}]")
        for q in range(2, 8):
            self(f"v_pk_add_f32 v[{s1}:{s1+1}], v[{s1}:{s1+1}], v[{E+2*q}:{E+2*q+1}]\nv_pk_add_f32 v[{s2}:{s2+1}], v[{s2}:{s2+1}], v[{P+2*q}:{P+2*q+1}]")
        self(f"""
        v_add_f32 v{s1}, v{s1}, v{s1+1}
        v_add_f32 v{s2}, v{s2}, v{s2+1}
        v_rcp_f32 v{s1}, v{s1}
        v_rcp_f32 v{s2}, v{s2}
        s_nop 0
        v_mov_b32 v{s1+1}, v{s1}
        v_mov_b32 v{s2+1}, v{s2}
        """)
        for q in range(8):
            self(f"v_pk_mul_f32 v[{E+2*q}:{E+2*q+1}], v[{E+2*q}:{E+2*q+1}], v[{s1}:{s1+1}]")
        for q in range(8):
            self(f"v_pk_mul_f32 v[{P+2*q}:{P+2*q+1}], v[{P+2*q}:{P+2*q+1}], v[{s2}:{s2+1}]")
        self.pack(out, E, 8)
        self.pack(out + 8, P, 8)

    def kgemm(self, nk, areg0, sld, tstride, oob_from=None, pre=10, tail=None):
        total = 2 * nk
        issued = [0]

        def ld():
            n = issued[0]
            if n >= total:
                return
            tile, k = divmod(n, nk)
            if k % 4 == 0:
                self(f"s_add_u32 s{sA}, s{sld}, {tile*tstride + k*1024}")
                if oob_from is not None and k >= oob_from:
                    self(f"s_cmp_eq_u32 s{sW}, 3\ns_cselect_b32 s{sA}, {OOB}, s{sA}")
            r = ACT + 4 * (n % 32)
            self(f"buffer_load_dwordx4 v[{r}:{r+3}], v{vL16}, {SRD}, s{sA} offen offset:{(k%4)*1024} sc1")
            issued[0] += 1
            if issued[0] == total and tail:
                tail()

        for _ in range(pre):
            ld()
        for n in range(total):
            tile, k = divmod(n, nk)
            self(f"s_waitcnt vmcnt({issued[0]-1-n + (self.tailcnt if issued[0]==total and tail else 0)})")
            r = ACT + 4 * (n % 32)
            for ft in range(2):
                acc = ACC + tile * 32 + ft * 16
                wa = areg0 + (k * 2 + ft) * 4
                c = "0" if k == 0 else f"v[{acc}:{acc+15}]"
                self(f"v_mfma_f32_32x32x16_bf16 v[{acc}:{acc+15}], a[{wa}:{wa+3}], v[{r}:{r+3}], {c}")
            ld()

    tailcnt = 0

    def finalize(self, xoff, xsoff, last_possible):
        F = ACT
        for tile in range(2):
            if tile == 0:
                self("s_nop 7\ns_nop 3")
            for b in range(8):
                r = ACC + tile * 32 + b * 4
                self(f"ds_write_b128 v{vRedW}, v[{r}:{r+3}] offset:{b*1024}")
            self("s_waitcnt lgkmcnt(0)\ns_barrier")
            P = F + tile * 48
            for kq in range(4):
                for q in range(2):
                    r = P + kq * 8 + q * 4
                    self(f"ds_read_b128 v[{r}:{r+3}], v{vRedR} offset:{kq*8192+q*1024}")
            X = P + 32
            for q in range(8):
                self(f"v_accvgpr_read_b32 v{X+q}, a{RES+tile*8+q}")
            self("s_waitcnt lgkmcnt(0)\ns_barrier")
            for kq in range(4):
                for q in range(4):
                    self(f"v_pk_add_f32 v[{X+2*q}:{X+2*q+1}], v[{X+2*q}:{X+2*q+1}], v[{P+kq*8+2*q}:{P+kq*8+2*q+1}]")
            self.pack(X + 8, X, 4)
            lo, ld = self.a.lab("Lfo"), self.a.lab("Lfd")
            if last_possible:
                self(f"s_cmp_lg_u32 s{sPass}, 0\ns_cbranch_scc1 {lo}")
            self(f"s_add_u32 s{sA}, s{sXst}, {xoff + tile*32768}")
            self.dual(lambda f: self(f"buffer_store_dwordx4 v[{X+8}:{X+11}], v{vFin}, {SRD}, s{sA} offen{f}"))
            S = P
            self(f"""
            v_pk_add_f32 v[{S}:{S+1}], v[{X}:{X+1}], v[{X+2}:{X+3}]
            v_pk_mul_f32 v[{S+2}:{S+3}], v[{X}:{X+1}], v[{X}:{X+1}]
            v_pk_add_f32 v[{S}:{S+1}], v[{S}:{S+1}], v[{X+4}:{X+5}]
            v_pk_fma_f32 v[{S+2}:{S+3}], v[{X+2}:{X+3}], v[{X+2}:{X+3}], v[{S+2}:{S+3}]
            v_pk_add_f32 v[{S}:{S+1}], v[{S}:{S+1}], v[{X+6}:{X+7}]
            v_pk_fma_f32 v[{S+2}:{S+3}], v[{X+4}:{X+5}], v[{X+4}:{X+5}], v[{S+2}:{S+3}]
            v_add_f32 v{S}, v{S}, v{S+1}
            v_pk_fma_f32 v[{S+2}:{S+3}], v[{X+6}:{X+7}], v[{X+6}:{X+7}], v[{S+2}:{S+3}]
            v_add_f32 v{S+1}, v{S+2}, v{S+3}
            s_nop 1
            v_permlane16_swap_b32 v{S}, v{S+1}
            s_nop 1
            v_add_f32 v{S}, v{S}, v{S+1}
            s_nop 1
            v_add_f32_dpp v{S}, v{S}, v{S} row_ror:8 row_mask:0xf bank_mask:0xf
            v_mov_b32 v{S+1}, v{S}
            s_nop 1
            v_permlane32_swap_b32 v{S}, v{S+1}
            s_nop 1
            v_add_f32 v{S}, v{S}, v{S+1}
            s_add_u32 s{sA}, s{sXSst}, {xsoff + tile*2048}
            s_mov_b64 exec, 0x00ff00ff
            """)
            self.dual(lambda f: self(f"buffer_store_dword v{S}, v{vFinS}, {SRD}, s{sA} offen{f}"))
            self("s_mov_b64 exec, -1")
            if not last_possible:
                for q in range(4):
                    self(f"v_lshlrev_b32 v{S+2*q}, 16, v{B2P+q}\nv_and_b32 v{S+2*q+1}, 0xffff0000, v{B2P+q}")
                for q in range(4):
                    self(f"v_pk_add_f32 v[{X+2*q}:{X+2*q+1}], v[{X+2*q}:{X+2*q+1}], v[{S+2*q}:{S+2*q+1}]")
            for q in range(8):
                self(f"v_accvgpr_write_b32 a{RES+tile*8+q}, v{X+q}")
            if last_possible:
                self(f"""
                s_branch {ld}
                {lo}:
                s_lshl_b32 s{sA}, s{sTA}, 15
                s_lshl_b32 s{sB}, s{sJ8}, 7
                s_add_u32 s{sA}, s{sA}, s{sB}
                s_add_u32 s{sA}, s{sA}, {tile*32768}
                buffer_store_dwordx4 v[{X+8}:{X+11}], v{vOut}, s[8:11], s{sA} offen
                {ld}:
                """)

    def prologue(self):
        g = self
        g(f"""
        s_cmp_ge_u32 s2, 256
        s_cbranch_scc1 Lend
        s_load_dwordx2 s[4:5], s[0:1], 88
        s_load_dwordx2 s[8:9], s[0:1], 72
        s_load_dwordx2 s[12:13], s[0:1], 48
        s_load_dwordx2 s[58:59], s[0:1], 64
        """)
        if self.stamps:
            g("s_memrealtime s[62:63]")
        g(f"""
        v_lshrrev_b32 v1, 6, v0
        v_and_b32 v0, 63, v0
        v_readfirstlane_b32 s{sW}, v1
        s_mov_b32 s6, {WS_BYTES}
        s_mov_b32 s7, 0x20000
        s_mov_b32 s10, {2048*512*2}
        s_mov_b32 s11, 0x20000
        s_mov_b32 s14, {1376*2}
        s_mov_b32 s15, 0x20000
        s_and_b32 s{sA}, s2, 7
        s_lshr_b32 s{sB}, s2, 3
        s_and_b32 s{sJ}, s{sB}, 15
        s_lshr_b32 s{sB}, s{sB}, 4
        s_lshl_b32 s{sC}, s{sA}, 1
        s_add_u32 s{sC}, s{sC}, s{sB}
        s_and_b32 s{sJ8}, s{sJ}, 7
        s_lshl_b32 s{sT}, s{sC}, 2
        s_lshr_b32 s{sA}, s{sJ}, 3
        s_lshl_b32 s{sA}, s{sA}, 1
        s_add_u32 s{sTA}, s{sT}, s{sA}
        s_add_u32 s{sT}, s{sT}, s{sW}
        s_mov_b32 s{sPass}, 0
        s_mov_b32 s{sMode}, 0
        v_lshlrev_b32 v{vL16}, 4, v0
        v_mov_b32 v{vZero}, 0
        s_mul_i32 s{sWQ}, s{sJ}, {96*KB}
        s_lshl_b32 s{sA}, s{sW}, 12
        s_add_u32 s{sWQ}, s{sWQ}, s{sA}
        s_add_u32 s{sWQ}, s{sWQ}, {WQKV}
        s_waitcnt lgkmcnt(0)
        """)
        g.dma_slot(sWQ, 0, 0)
        g.dma_slot(sWQ, 1, 32768)
        g(f"""
        s_getreg_b32 s{sA}, hwreg(HW_REG_XCC_ID)
        s_and_b32 s{sA}, s{sA}, 15
        s_add_u32 s{sA}, s{sA}, 1
        v_mov_b32 v{TMP}, s{sA}
        s_lshl_b32 s{sB}, s{sC}, 4
        s_add_u32 s{sB}, s{sB}, s{sJ}
        s_lshl_b32 s{sB}, s{sB}, 7
        s_add_u32 s{sB}, s{sB}, {FXCC}
        s_cmp_eq_u32 s{sW}, 0
        s_cselect_b32 s{sB}, s{sB}, {OOB}
        s_mov_b64 exec, 1
        buffer_store_dword v{TMP}, v{vZero}, {SRD}, s{sB} offen sc1
        s_mov_b64 exec, -1
        s_mul_i32 s{sA}, s{sJ}, 3
        s_lshl_b32 s{sB}, s{sJ}, 1
        s_add_u32 s{sB}, s{sB}, 11
        s_min_u32 s{sE}, s{sA}, s{sB}
        v_lshrrev_b32 v40, 5, v0                 ; h
        v_and_b32 v41, 31, v0                    ; t / m
        v_and_b32 v42, 15, v0
        v_lshrrev_b32 v43, 4, v0                 ; q
        v_and_b32 v44, 7, v0                     ; t'
        v_lshrrev_b32 v45, 3, v0                 ; c
        v_and_b32 v46, 1, v45                    ; c&1
        v_bfe_u32 v47, v41, 2, 1
        v_lshrrev_b32 v48, 3, v41
        v_and_b32 v49, 3, v0
        v_lshl_add_u32 v48, v48, 2, v49          ; 4g+r
        s_add_u32 s{sA}, s{sJ}, 16
        s_add_u32 s{sB}, s{sJ}, 32
        s_add_u32 s{sCc}, s{sE}, 48
        s_cmp_eq_u32 s{sW}, 1
        s_cselect_b32 s{sA}, s{sJ}, s{sA}
        s_cselect_b32 s{sB}, s{sCc}, s{sB}
        s_add_u32 s{sCc}, s{sE}, 49
        s_add_u32 s{sD}, s{sE}, 50
        s_cmp_ge_u32 s{sW}, 2
        s_cselect_b32 s{sA}, s{sCc}, s{sA}
        s_cselect_b32 s{sB}, s{sD}, s{sB}
        v_mov_b32 v50, s{sA}
        v_mov_b32 v51, s{sB}
        v_cmp_gt_u32 vcc, 32, v0
        v_lshl_add_u32 v52, v47, 4, v48          ; phi(m) = 16h'+4g+r
        s_mov_b32 s{sA}, {CSP}
        v_cndmask_b32 v50, v51, v50, vcc
        v_lshlrev_b32 v51, 9, v50
        v_lshl_add_u32 v51, v41, 4, v51
        buffer_load_dwordx4 v[56:59], v51, {SRD}, s{sA} offen
        v_subrev_u32 v50, 48, v50
        v_lshl_add_u32 v50, v50, 5, v52
        v_lshlrev_b32 v50, 1, v50
        buffer_load_ushort v60, v50, s[12:15], 0 offen
        s_lshl_b32 s{sA}, s{sJ}, 11
        s_add_u32 s{sA}, s{sA}, {PHI}
        buffer_load_dwordx4 v[{PHIF}:{PHIF+3}], v{vL16}, {SRD}, s{sA} offen
        buffer_load_dwordx4 v[{PHIF+4}:{PHIF+7}], v{vL16}, {SRD}, s{sA} offen offset:1024
        v_lshrrev_b32 v53, 1, v45
        v_lshlrev_b32 v{vFin}, 10, v53
        v_lshl_add_u32 v{vFin}, v46, 9, v{vFin}
        v_lshl_add_u32 v{vFin}, v44, 4, v{vFin}  ; (c>>1)*1024 + h*512 + t'*16
        v_lshrrev_b32 v54, 2, v45                ; ft
        v_and_b32 v55, 1, v53                    ; i
        v_lshlrev_b32 v54, 6, v54
        v_lshl_add_u32 v54, v46, 5, v54
        v_lshl_add_u32 v54, v55, 4, v54
        s_lshl_b32 s{sA}, s{sW}, 13
        v_lshl_add_u32 v{vOut}, v44, 10, v54
        v_add_u32 v{vOut}, s{sA}, v{vOut}
        s_mov_b32 s12, s58
        s_mov_b32 s13, s59
        s_mov_b32 s14, 1024
        s_lshl_b32 s{sA}, s{sJ8}, 7
        buffer_load_dwordx4 v[{B2P}:{B2P+3}], v54, s[12:15], s{sA} offen
        s_lshl_b32 s{sA}, s{sTA}, 15
        s_lshl_b32 s{sB}, s{sJ8}, 12
        s_add_u32 s{sA}, s{sA}, s{sB}
        s_lshl_b32 s{sB}, s{sW}, 7
        s_add_u32 s{sA}, s{sA}, s{sB}
        s_add_u32 s{sA}, s{sA}, {XF}
        s_add_u32 s{sXst}, s{sA}, {2*MB}
        s_add_u32 s{sB}, s{sA}, 32768
        buffer_load_dwordx4 v[64:67], v{vFin}, {SRD}, s{sA} offen
        buffer_load_dwordx4 v[68:71], v{vFin}, {SRD}, s{sB} offen
        s_lshl_b32 s{sXin}, s{sT}, 15
        s_add_u32 s{sOFst}, s{sXin}, {OF}
        s_add_u32 s{sXin}, s{sXin}, {XF}
        s_lshl_b32 s{sA}, s{sJ}, 11
        s_add_u32 s{sOFst}, s{sOFst}, s{sA}
        s_lshl_b32 s{sXSin}, s{sT}, 11
        s_add_u32 s{sXSin}, s{sXSin}, {XS}
        s_lshl_b32 s{sFXin}, s{sT}, 7
        s_lshl_b32 s{sA}, s{sJ}, 2
        s_add_u32 s{sA}, s{sA}, s{sFXin}
        s_add_u32 s{sFOst}, s{sA}, {FO}
        s_add_u32 s{sFHst}, s{sA}, {FH}
        s_add_u32 s{sFXin}, s{sFXin}, {FX}
        s_lshl_b32 s{sA}, s{sJ}, 2
        s_add_u32 s{sA}, s{sA}, s{sW}
        s_lshl_b32 s{sKVP}, s{sA}, 14
        s_add_u32 s{sKVP}, s{sKVP}, {KVP}
        s_lshl_b32 s{sKVZ}, s{sA}, 10
        s_add_u32 s{sKVZ}, s{sKVZ}, {KVZ}
        s_lshl_b32 s{sOFld}, s{sTA}, 15
        s_lshl_b32 s{sA}, s{sW}, 13
        s_add_u32 s{sOFld}, s{sOFld}, s{sA}
        s_add_u32 s{sOFld}, s{sOFld}, {OF}
        s_lshl_b32 s{sA}, s{sTA}, 7
        s_add_u32 s{sFOld}, s{sA}, {FO}
        s_add_u32 s{sFHld}, s{sA}, {FH}
        s_lshl_b32 s{sB}, s{sJ8}, 2
        s_add_u32 s{sB}, s{sB}, s{sW}
        s_lshl_b32 s{sB}, s{sB}, 2
        s_add_u32 s{sFXst}, s{sA}, s{sB}
        s_add_u32 s{sFXst}, s{sFXst}, {FX}
        s_lshl_b32 s{sXSst}, s{sTA}, 11
        s_lshl_b32 s{sA}, s{sJ8}, 8
        s_add_u32 s{sXSst}, s{sXSst}, s{sA}
        s_lshl_b32 s{sA}, s{sW}, 6
        s_add_u32 s{sXSst}, s{sXSst}, s{sA}
        s_add_u32 s{sXSst}, s{sXSst}, {XS + 128*KB}
        s_mul_i32 s{sHFst}, s{sT}, {86*KB}
        s_lshl_b32 s{sA}, s{sE}, 11
        s_add_u32 s{sHFst}, s{sHFst}, s{sA}
        s_add_u32 s{sHFst}, s{sHFst}, {HF}
        s_mul_i32 s{sHFld}, s{sTA}, {86*KB}
        s_mul_i32 s{sA}, s{sW}, {22*KB}
        s_add_u32 s{sHFld}, s{sHFld}, s{sA}
        s_add_u32 s{sHFld}, s{sHFld}, {HF}
        s_lshl_b32 s{sW1}, s{sE}, 15
        s_lshl_b32 s{sA}, s{sW}, 12
        s_add_u32 s{sW1}, s{sW1}, s{sA}
        s_add_u32 s{sW1}, s{sW1}, {W1}
        s_add_u32 s{sW1c}, s{sW1}, 65536
        s_cmp_lt_u32 s{sJ}, 11
        s_cselect_b32 s{sW1c}, s{sW1c}, {OOB}
        v_add_u32 v{vL16b}, 65536, v{vL16}
        v_lshlrev_b32 v{vF4}, 2, v0
        v_lshlrev_b32 v{vF2}, 2, v42
        v_lshl_add_u32 v{vF2}, v43, 7, v{vF2}
        v_lshlrev_b32 v{vStat}, 3, v41
        v_lshl_add_u32 v{vStat}, v40, 10, v{vStat}
        v_lshlrev_b32 v{vConst}, 6, v40
        v_add_u32 v{vConst}, {CONST}, v{vConst}
        s_mul_i32 s{sA}, s{sW}, {32*TROW}
        s_add_u32 s{sA}, s{sA}, {SCR}
        v_mul_u32_u24 v53, {TROW}, v41
        v_add_u32 v53, s{sA}, v53
        v_lshl_add_u32 v{vTWp}, v40, 6, v53
        v_lshl_add_u32 v{vTWv}, v40, 5, v53
        v_lshrrev_b32 v53, 2, v0                 ; 4q + r
        v_mul_u32_u24 v53, {TROW}, v53
        v_lshl_add_u32 v53, v49, 3, v53
        s_lshl_b32 s{sA}, s{sW}, 5
        s_add_u32 s{sA}, s{sA}, {SCR}
        v_add_u32 v{vTRa}, s{sA}, v53            ; + hh*64 + s*32
        s_lshr_b32 s{sB}, s{sW}, 1
        s_lshl_b32 s{sA}, s{sB}, 5
        s_add_u32 s{sA}, s{sA}, {SCR+128}
        v_add_u32 v{vTRb}, s{sA}, v53
        s_mul_i32 s{sA}, s{sB}, {16*80}
        s_and_b32 s{sB}, s{sW}, 1
        s_lshl_b32 s{sB}, s{sB}, 5
        s_add_u32 s{sA}, s{sA}, s{sB}
        s_add_u32 s{sA}, s{sA}, {KVA}
        v_mul_u32_u24 v{vKVw}, 80, v42
        v_lshl_add_u32 v{vKVw}, v43, 3, v{vKVw}
        v_add_u32 v{vKVw}, s{sA}, v{vKVw}
        v_mul_u32_u24 v{vKVr}, 80, v52
        v_add_u32 v{vKVr}, {KVA}, v{vKVr}
        v_mov_b32 v53, {ZERO}
        v_cmp_eq_u32 vcc, v40, v47
        v_lshlrev_b32 v{vZld}, 6, v42
        v_lshl_add_u32 v{vZld}, v43, 4, v{vZld}
        v_cndmask_b32 v{vKVr}, v53, v{vKVr}, vcc
        v_lshlrev_b32 v53, 7, v40
        v_xor_b32 v{vRedW}, v53, v{vL16}
        s_lshl_b32 s{sA}, s{sW}, 13
        s_add_u32 s{sA}, s{sA}, {SCR}
        v_add_u32 v{vRedW}, s{sA}, v{vRedW}
        s_lshl_b32 s{sA}, s{sW}, 7
        v_lshlrev_b32 v53, 9, v46
        v_lshl_add_u32 v53, v44, 4, v53
        v_add_u32 v53, s{sA}, v53
        v_lshlrev_b32 v55, 7, v46
        v_xor_b32 v53, v55, v53
        v_lshrrev_b32 v55, 1, v45
        v_lshl_add_u32 v53, v55, 11, v53
        v_add_u32 v{vRedR}, {SCR}, v53
        v_lshlrev_b32 v{vFinS}, 3, v44
        v_and_b32 v53, 1, v43
        v_lshl_add_u32 v{vFinS}, v53, 2, v{vFinS}
        s_lshl_b32 s{sA}, s{sW}, 8
        s_add_u32 s{sA}, s{sA}, {CONST}
        v_lshlrev_b32 v53, 7, v40
        v_lshl_add_u32 v53, v52, 2, v53
        v_add_u32 v53, s{sA}, v53
        v_add_u32 v55, {ZERO}, v{vF4}
        s_waitcnt vmcnt(0)
        v_add_f32 v56, v56, v57
        v_add_f32 v58, v58, v59
        v_add_f32 v56, v56, v58
        v_lshlrev_b32 v60, 16, v60
        s_cmp_eq_u32 s{sW}, 3
        s_cbranch_scc1 Lnoconst
        ds_write_b32 v53, v56
        s_cmp_eq_u32 s{sW}, 0
        s_cbranch_scc1 Lnoconst
        s_cmp_eq_u32 s{sW}, 1
        s_cselect_b32 exec_lo, 0, -1
        ds_write_b32 v53, v60 offset:{B1C-CONST-384}
        s_mov_b64 exec, -1
        Lnoconst:
        s_mov_b64 exec, 0xffff
        ds_write_b32 v55, v{vZero}
        s_mov_b64 exec, -1
        """)
        for q in range(8):
            g(f"v_lshlrev_b32 v{72+2*q}, 16, v{64+q}\nv_and_b32 v{73+2*q}, 0xffff0000, v{64+q}")
        for q in range(16):
            g(f"v_accvgpr_write_b32 a{RES+q}, v{72+q}")
        g("s_waitcnt lgkmcnt(0)\ns_barrier")

    def body(self):
        g = self
        g("Lpass:")
        g.stamp("start")
        l = g.a.lab("Lnopoll")
        g(f"s_cmp_eq_u32 s{sPass}, 0\ns_cbranch_scc1 {l}\ns_sub_u32 s{sB}, s{sFXin}, 0x2000")
        g.poll(vF4, sB, "0xffffffff")
        g(f"{l}:")
        g.stamp("x_seen")
        AK, AV = ACC, ACC + 16
        g.tgemm([0, 1], [AK, AV], [ACC + 32 + 4 * i for i in range(6)], load=(sXin, sXSin))
        g.dma_slot(sWQ, 2, 65536)
        g(f"s_lshl_b32 s{sCc}, s{sJ8}, 16\ns_lshl_b32 s{sD}, s{sW}, 14\ns_add_u32 s{sCc}, s{sCc}, s{sD}\ns_add_u32 s{sCc}, s{sCc}, {WO}")
        l1 = g.a.lab("Lwo")
        l2 = g.a.lab("Lwo2")
        g(f"s_cmp_lg_u32 s{sPass}, 0\ns_cbranch_scc1 {l1}")
        g.agpr_loads(sCc, 0, 16, 0)
        g(f"s_waitcnt vmcnt(24)\ns_branch {l2}\n{l1}:\ns_waitcnt vmcnt(8)\n{l2}:")
        CSK, CSV = ACC + 32, ACC + 48
        g.cs_read(CSK, 0)
        g.cs_read(CSV, 1)
        g.stats(TMP, False)
        g.stamp("kv_gemm")
        g("s_waitcnt lgkmcnt(0)")
        g.center(AK, CSK)
        KB_ = PHQ
        g.pack(KB_, AK, 8)
        P = CSK
        g.phi_mfma(P, KB_)
        g.center(AV, CSV)
        g(f"v_mov_b32 v{TMP+8}, v{vR}\nv_mov_b32 v{TMP+9}, v{vR}")
        for q in range(8):
            g(f"v_pk_mul_f32 v[{AV+2*q}:{AV+2*q+1}], v[{AV+2*q}:{AV+2*q+1}], v[{TMP+8}:{TMP+9}]")
        g.pack(PHQ + 8, AV, 8)
        g(f"ds_write_b128 v{vTWv}, v[{PHQ+8}:{PHQ+11}] offset:128\nds_write_b128 v{vTWv}, v[{PHQ+12}:{PHQ+15}] offset:144")
        g.softmax2(P, AK, AV)
        for q in range(4):
            g(f"ds_write_b128 v{vTWp}, v[{AV+4*q}:{AV+4*q+3}] offset:{q*16}")
        l1 = g.a.lab("Lwq")
        l2 = g.a.lab("Lwq2")
        g(f"s_cmp_lg_u32 s{sPass}, 0\ns_cbranch_scc1 {l1}\ns_waitcnt vmcnt(16)\ns_branch {l2}\n{l1}:\ns_waitcnt vmcnt(0)\n{l2}:")
        g("s_waitcnt lgkmcnt(0)\ns_barrier")
        FA, FB = ACC, ACC + 16
        for kk in range(4):
            for n in range(2):
                g(f"ds_read_b64_tr_b16 v[{FA+4*kk+2*n}:{FA+4*kk+2*n+1}], v{vTRa} offset:{(32*kk+16*n)*TROW}")
                g(f"ds_read_b64_tr_b16 v[{FB+4*kk+2*n}:{FB+4*kk+2*n+1}], v{vTRb} offset:{(32*kk+16*n)*TROW}")
        ONES, D1, D2 = TMP, TMP + 4, TMP + 8
        for q in range(4):
            g(f"v_mov_b32 v{ONES+q}, 0x3f803f80")
        for kk in range(4):
            g(f"s_waitcnt lgkmcnt({12-4*kk})")
            c1 = "0" if kk == 0 else f"v[{D1}:{D1+3}]"
            c2 = "0" if kk == 0 else f"v[{D2}:{D2+3}]"
            g(f"v_mfma_f32_16x16x32_bf16 v[{D1}:{D1+3}], v[{FA+4*kk}:{FA+4*kk+3}], v[{FB+4*kk}:{FB+4*kk+3}], {c1}")
            g(f"v_mfma_f32_16x16x32_bf16 v[{D2}:{D2+3}], v[{FA+4*kk}:{FA+4*kk+3}], v[{ONES}:{ONES+3}], {c2}")
        g(f"""
        s_lshl_b32 s{sA}, s{sC}, 10
        s_add_u32 s{sA}, s{sA}, s{sKVP}
        s_lshl_b32 s{sB}, s{sC}, 6
        s_add_u32 s{sB}, s{sB}, s{sKVZ}
        s_mov_b32 s{sK1}, 0x00010001
        s_mov_b32 s{sK2}, 0x00010001
        s_nop 2
        buffer_store_dwordx4 v[{D1}:{D1+3}], v{vL16}, {SRD}, s{sA} offen sc1
        s_mov_b64 exec, s[{sK1}:{sK2}]
        buffer_store_dwordx4 v[{D2}:{D2+3}], v{vLane}, {SRD}, s{sB} offen sc1
        s_mov_b64 exec, -1
        """)
        g.stamp("kv_pub")
        AQ = ACC
        g.tgemm([2], [AQ], [ACC + 32 + 4 * i for i in range(6)])
        RAW, ZR = ACT, ACT + 64
        lretry = g.a.lab("Lkvretry")
        lgo = g.a.lab("Lkvgo")

        def kvloads():
            for cc in range(16):
                if cc % 4 == 0:
                    g(f"s_add_u32 s{sA}, s{sKVP}, {cc*1024}")
                g(f"buffer_load_dwordx4 v[{RAW+4*cc}:{RAW+4*cc+3}], v{vL16}, {SRD}, s{sA} offen offset:{(cc%4)*1024} sc1")
            g(f"buffer_load_dwordx4 v[{ZR}:{ZR+3}], v{vZld}, {SRD}, s{sKVZ} offen sc1")

        kvloads()
        CSQ = ACC + 16
        g.cs_read(CSQ, 2)
        g("s_waitcnt lgkmcnt(0)")
        g.center(AQ, CSQ)
        g.pack(ACC + 48, AQ, 8)
        P = ACC + 32
        g.phi_mfma(P, ACC + 48)
        g("s_nop 7\ns_nop 3")
        g.softmax2(P, AQ, PHQ)
        g.stamp("q_done")
        def xcc():
            g(f"s_lshl_b32 s{sB}, s{sC}, 11\ns_add_u32 s{sB}, s{sB}, {FXCC}\nv_lshlrev_b32 v{TMP+1}, 7, v{vLane}")
            l = g.a.lab("Lxcc")
            g(f"""
            s_mov_b64 exec, 0xffff
            s_mov_b32 s{sTO}, 0
            {l}:
            buffer_load_dword v{TMP}, v{TMP+1}, {SRD}, s{sB} offen sc1
            s_add_u32 s{sTO}, s{sTO}, 1
            s_cmp_gt_u32 s{sTO}, 0x40000
            s_cbranch_scc1 Labort
            s_waitcnt vmcnt(0)
            v_cmp_eq_u32 vcc, 0, v{TMP}
            s_cbranch_vccnz {l}
            v_readfirstlane_b32 s{sA}, v{TMP}
            s_nop 1
            v_cmp_ne_u32 vcc, s{sA}, v{TMP}
            s_mov_b64 exec, -1
            s_cmp_eq_u64 vcc, 0
            s_cselect_b32 s{sMode}, 1, 0
            """)
        g.pass0(xcc)
        S = ACT + 72
        ZS = ACT + 104
        g(f"s_mov_b32 s{sTO}, 0\n{lretry}:\ns_waitcnt vmcnt(0)")
        for q in range(8):
            for hf in range(2):
                g(f"v_pk_add_f32 v[{S+4*q+2*hf}:{S+4*q+2*hf+1}], v[{RAW+8*q+2*hf}:{RAW+8*q+2*hf+1}], v[{RAW+8*q+4+2*hf}:{RAW+8*q+4+2*hf+1}]")
        for q in range(4):
            g(f"v_add_f32_dpp v{ZS+q}, v{ZR+q}, v{ZR+q} row_ror:8 row_mask:0xf bank_mask:0xf")
        for step, ror in ((4, 4), (2, 2), (1, 1)):
            for q in range(step):
                for hf in range(2):
                    g(f"v_pk_add_f32 v[{S+4*q+2*hf}:{S+4*q+2*hf+1}], v[{S+4*q+2*hf}:{S+4*q+2*hf+1}], v[{S+4*(q+step)+2*hf}:{S+4*(q+step)+2*hf+1}]")
            for q in range(4):
                g(f"v_add_f32_dpp v{ZS+q}, v{ZS+q}, v{ZS+q} row_ror:{ror} row_mask:0xf bank_mask:0xf")
        g(f"""
        v_pk_add_f32 v[{S+4}:{S+5}], v[{S}:{S+1}], v[{S+2}:{S+3}]
        v_pk_add_f32 v[{S+6}:{S+7}], v[{ZS}:{ZS+1}], v[{ZS+2}:{ZS+3}]
        v_pk_add_f32 v[{S+4}:{S+5}], v[{S+4}:{S+5}], v[{S+6}:{S+7}]
        v_cmp_u_f32 vcc, v{S+4}, v{S+5}
        s_cbranch_vccz {lgo}
        v_mov_b32 v{S+8}, 0
        """)
        for q in range(68):
            g(f"v_max_u32 v{S+8}, v{S+8}, v{RAW+q}")
        g(f"""
        v_cmp_eq_u32 vcc, -1, v{S+8}
        s_cbranch_vccz {lgo}
        s_add_u32 s{sTO}, s{sTO}, 1
        s_cmp_gt_u32 s{sTO}, 0x10000
        s_cbranch_scc1 Labort
        """)
        kvloads()
        g(f"s_branch {lretry}\n{lgo}:")
        g.stamp("kv_in")
        g.pack(S + 8, S, 2)
        g.pack(S + 10, ZS, 2)
        g(f"""
        ds_write_b64 v{vKVw}, v[{S+8}:{S+9}]
        s_lshl_b32 s{sA}, s{sW}, 5
        s_add_u32 s{sA}, s{sA}, {ZB}
        v_lshrrev_b32 v{S+12}, 1, v{vLane}
        v_add_u32 v{S+12}, s{sA}, v{S+12}
        s_mov_b64 exec, s[{sK1}:{sK2}]
        ds_write_b64 v{S+12}, v[{S+10}:{S+11}]
        s_mov_b64 exec, -1
        s_waitcnt lgkmcnt(0)
        s_barrier
        """)
        KA, ZZ, DO = ACC, ACC + 16, ACC + 32
        for i in range(4):
            g(f"ds_read_b128 v[{ZZ+4*i}:{ZZ+4*i+3}], v{vConst} offset:{ZB-CONST+i*16}")
        for i in range(4):
            g(f"ds_read_b128 v[{KA+4*i}:{KA+4*i+3}], v{vKVr} offset:{i*16}")
        g.dma_slot(sW1, 0, 0)
        g(f"v_mov_b32 v{TMP}, {f2u(1e-6)}\ns_waitcnt lgkmcnt(4)")
        for q in range(16):
            g(f"v_dot2_f32_bf16 v{TMP}, v{PHQ+q}, v{ZZ+q}, v{TMP}")
        g("s_waitcnt lgkmcnt(0)")
        for i in range(4):
            c = "0" if i == 0 else f"v[{DO}:{DO+15}]"
            g(f"v_mfma_f32_32x32x16_bf16 v[{DO}:{DO+15}], v[{KA+4*i}:{KA+4*i+3}], v[{PHQ+4*i}:{PHQ+4*i+3}], {c}")
        g(f"v_rcp_f32 v{TMP}, v{TMP}\ns_nop 0\nv_mov_b32 v{TMP+1}, v{TMP}\ns_nop 7\ns_nop 0")
        for q in range(8):
            g(f"v_pk_mul_f32 v[{DO+2*q}:{DO+2*q+1}], v[{DO+2*q}:{DO+2*q+1}], v[{TMP}:{TMP+1}]")
        g.pack(ACC + 48, DO, 8)
        g.dual(lambda f: g(f"buffer_store_dwordx4 v[{ACC+48}:{ACC+51}], v{vL16}, {SRD}, s{sOFst} offen{f}\nbuffer_store_dwordx4 v[{ACC+52}:{ACC+55}], v{vL16}, {SRD}, s{sOFst} offen offset:1024{f}"))
        g.dma_slot(sW1, 1, 32768)
        g("s_waitcnt vmcnt(8)")
        g.flag(sFOst)
        g.stamp("o_pub")
        g.poll(vF2, sFOld, "0xffffffff")
        g.stamp("o_seen")
        g.tailcnt = 8
        g.kgemm(8, 0, sOFld, 32768, tail=lambda: g.dma_slot(sW1c, 2, 0))
        g.stamp("wo_gemm")
        g.finalize(0, 0, False)
        g(f"s_mul_i32 s{sCc}, s{sJ8}, {172*KB}\ns_mul_i32 s{sD}, s{sW}, {44*KB}\ns_add_u32 s{sCc}, s{sCc}, s{sD}\ns_add_u32 s{sK3}, s{sCc}, {W2}")
        l1 = g.a.lab("Lw2a")
        l2 = g.a.lab("Lw2b")
        g(f"s_cmp_lg_u32 s{sPass}, 0\ns_cbranch_scc1 {l1}")
        g.agpr_loads(sK3, 0, 16, 64)
        g(f"s_waitcnt vmcnt(16)\ns_branch {l2}\n{l1}:\ns_waitcnt vmcnt(0)\n{l2}:")
        g.flag(sFXst, (0, 128))
        g("s_barrier")
        g.stamp("x1_pub")
        g.poll(vF4, sFXin, "0xffffffff")
        g.stamp("x1_seen")
        g(f"s_add_u32 s{sD}, s{sXin}, {2*MB}\ns_add_u32 s{sE}, s{sXSin}, {128*KB}")
        accs = [ACC, ACC + 16, ACC + 32]
        g.tgemm([0, 1, 2], accs, [ACC + 48 + 4 * i for i in range(4)] + [PHQ, PHQ + 4], load=(sD, sE))
        l1 = g.a.lab("Lw2c")
        l2 = g.a.lab("Lw2d")
        g(f"s_cmp_lg_u32 s{sPass}, 0\ns_cbranch_scc1 {l1}")
        g.agpr_loads(sK3, 16, 28, 64, oob_from=40)
        g(f"s_waitcnt vmcnt(28)\ns_branch {l2}\n{l1}:\ns_waitcnt vmcnt(0)\n{l2}:")
        for t in range(3):
            g.cs_read(ACT + 32 * t, 3 + t)
            g.cs_read(ACT + 32 * t + 16, t, base=B1C)
        g.stats(TMP, True)
        g.stamp("w1_gemm")
        RM, RR, KA_, KB2, ONE = TMP, TMP + 2, TMP + 4, TMP + 6, TMP + 8
        g(f"""
        v_mul_f32 v{RM}, v{vM}, v{vR}
        v_sub_f32 v{RM}, 0, v{RM}
        v_mov_b32 v{RM+1}, v{RM}
        v_mov_b32 v{RR}, v{vR}
        v_mov_b32 v{RR+1}, v{vR}
        v_mov_b32 v{KA_}, {f2u(GA)}
        v_mov_b32 v{KA_+1}, {f2u(GA)}
        v_mov_b32 v{KB2}, {f2u(GB)}
        v_mov_b32 v{KB2+1}, {f2u(GB)}
        v_mov_b32 v{ONE}, 1.0
        v_mov_b32 v{ONE+1}, 1.0
        s_add_u32 s{sHFst2}, s{sHFst}, 4096
        s_cmp_lt_u32 s{sJ}, 11
        s_cselect_b32 s{sHFst2}, s{sHFst2}, {OOB}
        s_waitcnt lgkmcnt(0)
        """)
        for t in range(3):
            X = accs[t]
            CS, B1 = ACT + 32 * t, ACT + 32 * t + 16
            pr = lambda r, q: f"v[{r+2*q}:{r+2*q+1}]"
            for q in range(8):
                g(f"v_pk_fma_f32 {pr(B1,q)}, {pr(CS,q)}, v[{RM}:{RM+1}], {pr(B1,q)}")
            for q in range(8):
                g(f"v_pk_fma_f32 {pr(X,q)}, {pr(X,q)}, v[{RR}:{RR+1}], {pr(B1,q)}")
            for q in range(8):
                g(f"v_pk_mul_f32 {pr(CS,q)}, {pr(X,q)}, {pr(X,q)}")
            for q in range(8):
                g(f"v_pk_fma_f32 {pr(CS,q)}, {pr(CS,q)}, v[{KB2}:{KB2+1}], v[{KA_}:{KA_+1}]")
            for q in range(8):
                g(f"v_pk_mul_f32 {pr(CS,q)}, {pr(CS,q)}, {pr(X,q)}")
            for q in range(16):
                g(f"v_exp_f32 v{CS+q}, v{CS+q}")
            for q in range(8):
                g(f"v_pk_add_f32 {pr(CS,q)}, {pr(CS,q)}, v[{ONE}:{ONE+1}]")
            for q in range(16):
                g(f"v_rcp_f32 v{CS+q}, v{CS+q}")
            for q in range(8):
                g(f"v_pk_mul_f32 {pr(X,q)}, {pr(X,q)}, {pr(CS,q)}")
            g.pack(B1, X, 8)
            so, o = (sHFst, t * 2048) if t < 2 else (sHFst2, 0)
            g.dual(lambda f: g(f"buffer_store_dwordx4 v[{B1}:{B1+3}], v{vL16}, {SRD}, s{so} offen offset:{o}{f}\nbuffer_store_dwordx4 v[{B1+4}:{B1+7}], v{vL16}, {SRD}, s{so} offen offset:{o+1024}{f}"))
        g("s_waitcnt vmcnt(0)")
        g.flag(sFHst)
        g("s_barrier")
        g.pass0(lambda: g.dma_slot(sWQ, 0, 0))
        g.stamp("h_pub")
        g.poll(vF2, sFHld, "0xffffffff")
        g.stamp("h_seen")
        g.tailcnt = 0
        g.kgemm(22, 64, sHFld, 86 * KB, oob_from=20)
        g.pass0(lambda: g.dma_slot(sWQ, 1, 32768))
        g.stamp("w2_gemm")
        g.finalize(2 * MB, 128 * KB, True)
        g(f"s_cmp_lg_u32 s{sPass}, 0\ns_cbranch_scc1 Lfin")
        g(f"s_waitcnt vmcnt(0)\ns_add_u32 s{sB}, s{sFXst}, 0x2000")
        g.flag(sB, (0, 128))
        g("s_barrier")
        g(f"""
        s_mov_b32 s{sPass}, 1
        s_add_u32 s{sXin}, s{sXin}, {4*MB}
        s_add_u32 s{sXSin}, s{sXSin}, {256*KB}
        s_add_u32 s{sFXin}, s{sFXin}, 0x4000
        s_add_u32 s{sKVP}, s{sKVP}, {MB}
        s_add_u32 s{sKVZ}, s{sKVZ}, {64*KB}
        s_add_u32 s{sOFst}, s{sOFst}, {2*MB}
        s_add_u32 s{sFOst}, s{sFOst}, 0x2000
        s_add_u32 s{sOFld}, s{sOFld}, {2*MB}
        s_add_u32 s{sFOld}, s{sFOld}, 0x2000
        s_add_u32 s{sXst}, s{sXst}, {4*MB}
        s_add_u32 s{sXSst}, s{sXSst}, {256*KB}
        s_add_u32 s{sFXst}, s{sFXst}, 0x4000
        s_add_u32 s{sHFst}, s{sHFst}, {HF_STRIDE}
        s_add_u32 s{sFHst}, s{sFHst}, 0x2000
        s_add_u32 s{sHFld}, s{sHFld}, {HF_STRIDE}
        s_add_u32 s{sFHld}, s{sFHld}, 0x2000
        s_branch Lpass
        Lfin:
        """)
        if self.stamps:
            g(f"""
            s_waitcnt vmcnt(0)
            s_memtime s[56:57]
            s_memrealtime s[60:61]
            s_waitcnt lgkmcnt(0)
            s_mov_b32 s63, s60
            s_mov_b32 s61, s56
            s_mov_b32 s60, s{sMode}
            s_lshl_b32 s{sA}, s2, 2
            s_add_u32 s{sA}, s{sA}, s{sW}
            s_mul_i32 s{sA}, s{sA}, 160
            s_add_u32 s{sA}, s{sA}, {0x2000000}
            s_mov_b64 exec, 1
            """)
            for q in range(9):
                for e in range(4):
                    g(f"v_mov_b32 v{ACC+4*q+e}, s{60+4*q+e}")
                g(f"buffer_store_dwordx4 v[{ACC+4*q}:{ACC+4*q+3}], v{vZero}, {SRD}, s{sA} offen offset:{q*16}")
        g("""
        Labort:
        Lend:
        s_endpgm
        """)


def build(stamps=False):
    g = G(stamps)
    g.names = []
    a = g.a
    header(a, f"; @launch kernel={PREP} grid=({PREP_GRID},1,1) block=(256,1,1) lds={PREP_LDS}\n; @launch kernel={MAIN} grid=(256,1,1) block=(256,1,1) lds={MAIN_LDS}")
    gen_prep(a)
    kernel_begin(a, MAIN)
    g.prologue()
    g.body()
    a('.section .rodata,"a"')
    descriptor(a, PREP, vgpr=96, sgpr=64, accum=96)
    descriptor(a, MAIN, vgpr=512, sgpr=102, accum=256)
    return a.text(), g.names


if __name__ == "__main__":
    st = len(sys.argv) > 1 and sys.argv[1] == "stamps"
    t, names = build(st)
    sys.stdout.write(t)
    if st:
        open("stamp_names.txt", "w").write("\n".join(names))
```
